```python
import torch

def _softmax(x, axis=-1):
    return torch.softmax(x, dim=axis)
def _gelu(x):
    return torch.nn.functional.gelu(x, approximate="tanh")
def _silu(x):
    return torch.nn.functional.silu(x)
def _sigmoid(x):
    return torch.sigmoid(x)
def _layernorm(x, axis=-1, eps=1e-5):
    m = x.mean(dim=axis, keepdim=True)
    v = x.var(dim=axis, keepdim=True, unbiased=False)
    return (x - m) / torch.sqrt(v + eps)
def _scatter_add(tgt, idx, src, axis=0):
    return tgt.clone().index_add_(axis, idx, src)
def _segment_sum(src, seg, n):
    out = torch.zeros((n,) + src.shape[1:], dtype=src.dtype)
    return out.index_add_(0, seg, src)
def _pad(x, pw):
    flat = tuple(v for pair in reversed(pw) for v in pair)
    return torch.nn.functional.pad(x, flat)

kernel_name = 'recurrent_scan__linear_kernel_hedgehog__dense_activation_squared_relu__prompt'

def setup_inputs():

    _w = (lambda a: (lambda t: t.to(torch.bfloat16) if t.is_floating_point() else t)(torch.as_tensor(a)))
    def _A_setup():
        B, S, D, H = 1, 2048, 448, 16
        Dh = D // H
        return {
            "x": _w((lambda *s: torch.randn(*s, dtype=torch.bfloat16) * 0.05)(B, S, D)),
            "wqkv": _w((lambda *s: torch.randn(*s, dtype=torch.bfloat16) * 0.2)(D, 3 * D)),
            "w_phi": _w((lambda *s: torch.randn(*s, dtype=torch.bfloat16) * 0.2)(H, Dh, Dh) * (Dh ** -0.5)),
            "wo": _w((lambda *s: torch.randn(*s, dtype=torch.bfloat16) * 0.05)(D, D)),
        }
    _A_in = _A_setup()

    def _B_setup():
        B, S, D, F = 1, 2048, 448, 1792
        return {
            "x": _w((lambda *s: torch.randn(*s, dtype=torch.bfloat16) * 0.05)(B, S, D)),
            "w1": _w((lambda *s: torch.randn(*s, dtype=torch.bfloat16) * 0.05)(D, F)),
            "b1": _w((lambda *s: torch.randn(*s, dtype=torch.bfloat16) * 0.2)(F)),
            "w2": _w((lambda *s: torch.randn(*s, dtype=torch.bfloat16) * 0.05)(F, D)),
            "b2": _w((lambda *s: torch.randn(*s, dtype=torch.bfloat16) * 0.8)(D)),
        }
    _B_in = _B_setup()

    return {
        "A_x": _A_in["x"],
        "A_wqkv": _A_in["wqkv"],
        "A_w_phi": _A_in["w_phi"],
        "A_wo": _A_in["wo"],
        "B_x": _B_in["x"],
        "B_w1": _B_in["w1"],
        "B_b1": _B_in["b1"],
        "B_w2": _B_in["w2"],
        "B_b2": _B_in["b2"],
    }

def reference(A_x, A_wqkv, A_w_phi, A_wo, B_x, B_w1, B_b1, B_w2, B_b2):
    def _A_ref(x, wqkv, w_phi, wo):
        B, S, D = x.shape
        H = 16; Dh = D // H
        qkv = (lambda x, *d: x.permute(*d))((x @ wqkv).reshape(B, S, 3, H, Dh), 2, 0, 3, 1, 4)
        q, k, v = qkv[0], qkv[1], qkv[2]
        pq = torch.einsum("bhsd,hdf->bhsf", q, w_phi)
        pk = torch.einsum("bhsd,hdf->bhsf", k, w_phi)
        phi_q = torch.concatenate([_softmax(pq, axis=-1), _softmax(-pq, axis=-1)], axis=-1)
        phi_k = torch.concatenate([_softmax(pk, axis=-1), _softmax(-pk, axis=-1)], axis=-1)
        kv = torch.einsum("bhsf,bhsd->bhfd", phi_k, v)
        z  = torch.einsum("bhsf->bhf", phi_k)
        num = torch.einsum("bhqf,bhfd->bhqd", phi_q, kv)
        den = torch.einsum("bhqf,bhf->bhq", phi_q, z)[..., None] + 1e-6
        o = num / den
        return (lambda x, *d: x.permute(*d))(o, 0, 2, 1, 3).reshape(B, S, D) @ wo

    def _B_ref(x, w1, b1, w2, b2):
        h = torch.einsum("bsd,df->bsf", x, w1) + b1
        zero = torch.zeros_like(h)
        r = torch.where(h > zero, h, zero)
        h = r * r
        out = torch.einsum("bsf,fd->bsd", h, w2) + b2
        return out

    x = A_x
    xn = _layernorm(x, axis=-1)
    s = _A_ref(xn, A_wqkv, A_w_phi, A_wo)
    g = _silu(_B_ref(xn, B_w1, B_b1, B_w2, B_b2))
    return x + s * g
```

```python
import re

class Asm:
    def __init__(self):
        self.lines = []
        self.vm = []
        self.lg = []
    def __call__(self, s):
        self.lines.append("  " + s)
    def raw(self, s):
        self.lines.append(s)
    def label(self, name):
        self.lines.append(name + ":")
    def comment(self, s):
        self.lines.append("  ; " + s)
    def vmem(self, s, tag=None):
        self(s); self.vm.append(tag)
        assert len(self.vm) <= 63, "too many outstanding vmem ops"
    def wait_vm(self, *tags, extra_lg=None):
        idx = -1
        for i, t in enumerate(self.vm):
            if t in tags: idx = i
        if idx < 0: return
        n = len(self.vm) - 1 - idx
        self(f"s_waitcnt vmcnt({n})")
        self.vm = self.vm[idx + 1:]
    def wait_vm_all(self):
        self("s_waitcnt vmcnt(0)"); self.vm = []
    def forget_vm(self):
        self.vm = []
    def lds(self, s, tag=None):
        self(s); self.lg.append(tag)
        assert len(self.lg) <= 15, "too many outstanding lds ops"
    def wait_lg(self, *tags):
        idx = -1
        for i, t in enumerate(self.lg):
            if t in tags: idx = i
        if idx < 0: return
        n = len(self.lg) - 1 - idx
        self(f"s_waitcnt lgkmcnt({n})")
        self.lg = self.lg[idx + 1:]
    def wait_lg_all(self):
        self("s_waitcnt lgkmcnt(0)"); self.lg = []
    def text(self):
        return "\n".join(self.lines) + "\n"

_TRANS = ("v_exp_f32", "v_log_f32", "v_rcp_f32", "v_rsq_f32", "v_sqrt_f32", "v_sin_f32", "v_cos_f32")

def _regs(op):
    op = op.strip()
    op = op.split()[0] if op else op
    op = op.lstrip("-").replace("abs(", "").replace(")", "").replace("|", "")
    m = re.fullmatch(r"([vsa])\[(\d+):(\d+)\]", op)
    if m: return [(m.group(1), i) for i in range(int(m.group(2)), int(m.group(3)) + 1)]
    m = re.fullmatch(r"([vsa])(\d+)", op)
    if m: return [(m.group(1), int(m.group(2)))]
    if op in ("vcc", "vcc_lo", "vcc_hi"): return [("vcc", 0)]
    if op == "m0": return [("m0", 0)]
    if op in ("exec", "exec_lo", "exec_hi"): return [("exec", 0)]
    return []

def _split_ops(s):
    out, depth, cur = [], 0, ""
    for ch in s:
        if ch == "[": depth += 1
        if ch == "]": depth -= 1
        if ch == "," and depth == 0:
            out.append(cur); cur = ""
        else:
            cur += ch
    if cur.strip(): out.append(cur)
    return [o.strip() for o in out]

class Ins:
    __slots__ = ("text", "op", "kind", "w", "r", "srcc", "srcab", "d", "trans", "states", "wide_store", "dpp")

def parse(line):
    t = line.split(";")[0].strip()
    if not t or t.endswith(":") or t.startswith("."): return None
    parts = t.split(None, 1)
    op = parts[0]; ops = _split_ops(parts[1]) if len(parts) > 1 else []
    I = Ins(); I.text = line; I.op = op; I.w = []; I.r = []; I.srcc = []; I.srcab = []; I.d = []
    I.trans = False; I.states = 1; I.wide_store = False; I.dpp = ("row_" in t or "quad_perm" in t or "wave_" in t)
    base = op.replace("_e32", "").replace("_e64", "").replace("_dpp", "")
    if op == "s_nop":
        I.kind = "nop"; I.states = int(ops[0], 0) + 1
    elif op.startswith("v_mfma"):
        I.kind = "mfma"; I.d = _regs(ops[0]); I.w = I.d
        I.srcab = _regs(ops[1]) + _regs(ops[2]); I.srcc = _regs(ops[3]); I.r = I.srcab + I.srcc
    elif op.startswith("v_"):
        I.kind = "valu"; I.trans = base in _TRANS
        if base.startswith("v_cmp"):
            I.w = _regs(ops[0]); I.r = sum((_regs(o) for o in ops[1:]), [])
        elif base.startswith("v_permlane"):
            I.w = _regs(ops[0]) + _regs(ops[1]); I.r = list(I.w)
        elif base in ("v_dot2c_f32_bf16", "v_fmac_f32", "v_writelane_b32"):
            I.w = _regs(ops[0]); I.r = sum((_regs(o) for o in ops), [])
        elif base in ("v_add_co_u32", "v_addc_co_u32"):
            I.w = _regs(ops[0]) + _regs(ops[1]); I.r = sum((_regs(o) for o in ops[2:]), [])
        else:
            I.w = _regs(ops[0]); I.r = sum((_regs(o) for o in ops[1:]), [])
            if base == "v_cndmask_b32" and len(ops) == 3: I.r += [("vcc", 0)]
    elif op.startswith("ds_"):
        if op.startswith("ds_read") or "_rtn" in op:
            I.kind = "ds"; I.w = _regs(ops[0]); I.r = sum((_regs(o) for o in ops[1:]), [])
        else:
            I.kind = "ds"; I.r = sum((_regs(o) for o in ops), [])
    elif op.startswith("buffer_") or op.startswith("global_"):
        lds = (" lds" in t)
        if "store" in op or ("atomic" in op):
            I.kind = "vmem"; I.r = sum((_regs(o) for o in ops), [])
            I.wide_store = ("dwordx4" in op or "dwordx3" in op)
            if op.startswith("buffer_"): I.d = _regs(ops[0])
            else: I.d = _regs(ops[1])
        elif lds:
            I.kind = "dma"; I.r = sum((_regs(o) for o in ops), []) + [("m0", 0)]
        else:
            I.kind = "vmem"; I.w = _regs(ops[0]); I.r = sum((_regs(o) for o in ops[1:]), [])
    elif op.startswith("s_"):
        I.kind = "salu"
        if op in ("s_waitcnt", "s_barrier", "s_endpgm", "s_branch", "s_sleep", "s_setprio") or op.startswith("s_cbranch"):
            pass
        elif op.startswith("s_cmp") or op.startswith("s_bitcmp"):
            I.r = sum((_regs(o) for o in ops), [])
        elif op == "s_setpc_b64":
            I.r = _regs(ops[0])
        else:
            I.w = _regs(ops[0]) if ops else []; I.r = sum((_regs(o) for o in ops[1:]), [])
    else:
        raise ValueError("unknown instruction " + line)
    return I

def _need(P, C):
    n = 0
    Pw = set(P.w); Cr = set(C.r); Cw = set(C.w)
    if P.kind == "valu":
        vw = {x for x in Pw if x[0] == "v"}
        sw = {x for x in Pw if x[0] in ("s", "vcc")}
        if C.kind == "mfma" and vw & Cr: n = max(n, 2)
        if C.kind == "valu":
            if sw & Cr:
                n = max(n, 4 if C.op.startswith(("v_readlane", "v_writelane")) else 2)
            if vw & Cr:
                if C.op.startswith(("v_readlane", "v_readfirstlane")): n = max(n, 1)
                if C.op.startswith("v_permlane"): n = max(n, 2)
                if C.dpp: n = max(n, 2)
                if P.trans: n = max(n, 1)
        if C.kind in ("vmem", "dma") and sw & Cr: n = max(n, 5)
        if C.kind == "salu" and sw & Cr: n = max(n, 1)
    elif P.kind == "mfma":
        D = set(P.d)
        if C.kind == "mfma":
            if D & set(C.srcab): n = max(n, 12)
            if D & set(C.srcc) and set(C.srcc) != D: n = max(n, 10)
            if D & set(C.d) and set(C.d) != D: n = max(n, 10)
        elif C.kind in ("valu", "ds", "vmem", "dma"):
            if D & (Cr | Cw): n = max(n, 12)
        if C.kind == "valu" and set(P.srcc) & Cw: n = max(n, 7)
    elif P.kind == "salu":
        if ("m0", 0) in Pw and C.kind == "dma": n = max(n, 1)
    elif P.kind == "vmem" and P.wide_store:
        if set(P.d) & Cw: n = max(n, 2 if C.kind == "valu" else 1)
    return n

def fix_hazards(text):
    lines = text.split("\n")
    labels = {}
    for i, l in enumerate(lines):
        t = l.strip()
        if t.endswith(":") and not t.startswith(";"): labels[t[:-1]] = i
    out = []; hist = []; inserted = 0
    blk_end = -1; blk_id = None; nblk = 0
    for li, line in enumerate(lines):
        if blk_id is not None and li >= blk_end: blk_id = None
        I = parse(line)
        if I is None:
            out.append(line); continue
        if I.kind != "nop":
            need = 0
            for pi, (P, pb) in enumerate(hist):
                k = _need(P, I)
                if k:
                    have = 0
                    for (X, xb) in hist[pi + 1:]:
                        if xb is None or xb == pb or xb == blk_id: have += X.states
                    need = max(need, k - have)
            while need > 0:
                k = min(need, 16)
                nl = f"  s_nop {k-1}"
                out.append(nl); hist.append((parse(nl), blk_id)); need -= k; inserted += 1
        out.append(line)
        hist.append((I, blk_id))
        if len(hist) > 64: hist = hist[-64:]
        if I.op.startswith("s_cbranch") and blk_id is None:
            tgt = line.split()[1].strip()
            if tgt in labels and li < labels[tgt] < li + 80:
                nblk += 1; blk_id = nblk; blk_end = labels[tgt]
    return "\n".join(out), inserted
```

```python
import sys
sys.path.insert(0, "dev")
from asmlib import Asm, fix_hazards

KNAME = "recurrent_scan__linear_kernel_hedgehog__dense_activation_squared_relu__prompt"

S, D, H, DH, F = 2048, 448, 16, 28, 1792
XP, QP, W1P, W2P = 896, 2688, 3584, 896
LOG2E = 0x3FB8AA3B

WS_NONCE = 0
WS_FP = 0x1000
WS_FK = WS_FP + 512 * 128
WS_FH = WS_FK + 128 * 128
WS_FO = WS_FH + 256 * 128
WS_PART = 0x40000
WS_KVF = WS_PART + 0x200000
WS_OF = WS_KVF + 0x10000
WS_HF = WS_OF + 0x200000
WS_DBG = WS_HF + 64 * 112 * 1024
WS_USED = WS_DBG + 0x400000
assert WS_FO + 512 * 128 <= WS_PART

MISC = 147456
L_WPHI = MISC
L_ZERO = MISC + 4096
L_CNT = MISC + 4160
L_CS = MISC + 4224
L_B1 = MISC + 5120
LDS_BYTES = 163840
KV_SLOT, Q_SLOT = 32768, 36864
NRING = 10
RING_BYTES = NRING * 2048
L_WO = 4 * RING_BYTES
WO_REG = 15360
assert L_WO + 4 * WO_REG <= MISC
NHB = 6

SRD_X, SRD_WQKV, SRD_W1, SRD_W2, SRD_WO, SRD_WS, SRD_OUT, SRD_T = 28, 32, 36, 40, 44, 48, 52, 56
SRD_DBG = 60
sR, sJ, sW, sRG, sHB, sJJ, sTAG = 64, 65, 66, 67, 68, 69, 70
sXO, sWA, sWB, sWC, sP2 = 71, 72, 73, 74, 75
sONES = 76
sT0, sT1, sT2, sT3, sT4, sT5 = 77, 78, 79, 80, 81, 82
sFS = 83
sHSO = 88
sMASKH = 90
sEX = 92
sB2P = 20
sHALF, sC, sRR, sRING, sOUTO = 4, 5, 6, 7, 8
sW2B = 10
sHB0 = 12
def srd(n): return f"s[{n}:{n+3}]"

vTID, vLANE, vL31, vH = 0, 1, 2, 3
vD0, vD1, vDP2 = 4, 5, 6
vXR = 7
vXC = 11
vAS = 15
vAC = 18
vST = 21
vCSA = 25
vNM, vRS = 28, 29
vT0, vT1 = 30, 31
vAF = 32
vWP = 56
vACC = 64
vTMP = 112
vX = 128
vPQ = 240

vS_W2P, vS_HL, vS_A0, vS_A1, vS_OUTV = 4, 5, 6, 7, 8
vS_AF = 32
vS_ACC = 64
vS_B = 128
vS_X, vS_B2 = 208, 212
def vr(a, n): return f"v[{a}:{a+n-1}]"

class G:
    def __init__(self, debug_stage=None, timing=False):
        self.a = Asm()
        self.timing = timing
        self.s2_entry_vm = {}
        self.debug_stage = debug_stage
        self.uid = 0
    def L(self, base):
        self.uid += 1
        return f"L_{base}_{self.uid}"

    def mk_srd(self, dst, plo, size):
        a = self.a
        a(f"s_mov_b32 s{dst}, s{plo}")
        a(f"s_and_b32 s{dst+1}, s{plo+1}, 0xffff")
        a(f"s_mov_b32 s{dst+2}, {size}")
        a(f"s_mov_b32 s{dst+3}, 0x20000")

    def dma(self, vaddr, srdn, soff, ldsaddr_expr, tag):
        a = self.a
        sreg, c = ldsaddr_expr
        if sreg is None: a(f"s_mov_b32 m0, {c}")
        else: a(f"s_add_u32 m0, s{sreg}, {c}")
        a.vmem(f"buffer_load_dwordx4 v{vaddr}, {srd(srdn)}, s{soff} offen lds", tag)

    def rne_bf16(self, dst, src):
        a = self.a
        a(f"v_cvt_pk_bf16_f32 v{dst}, v{src}, v{src}")
        a(f"v_lshlrev_b32 v{dst}, 16, v{dst}")

    def xhalf(self, op, x, t):
        a = self.a
        a(f"v_mov_b32 v{t}, v{x}")
        a(f"v_permlane32_swap_b32 v{x}, v{t}")
        a(f"{op} v{x}, v{x}, v{t}")

    def prologue(self):
        a = self.a
        a("s_cmp_ge_u32 s2, 256")
        a("s_cbranch_scc1 L_END")
        a("s_load_dwordx16 s[4:19], s[0:1], 0")
        a("s_load_dwordx8 s[20:27], s[0:1], 64")
        a("s_getpc_b64 s[94:95]")
        a.label("L_PC")
        a(f"v_and_b32 v{vLANE}, 63, v0")
        a(f"v_lshrrev_b32 v{vT0}, 6, v0")
        a(f"v_lshlrev_b32 v{vT1}, 4, v0")
        a("s_lshr_b32 s96, s2, 3")
        a("s_and_b32 s96, s96, 3")
        a("s_mul_i32 s96, s96, CODE_QUARTER")
        a(f"s_mov_b32 s{SRD_T}, s94")
        a(f"s_and_b32 s{SRD_T+1}, s95, 0xffff")
        a(f"s_mov_b32 s{SRD_T+2}, L_CODE_END-L_PC")
        a(f"s_mov_b32 s{SRD_T+3}, 0x20000")
        a(f"v_readfirstlane_b32 s{sW}, v{vT0}")
        a(f"buffer_load_dwordx4 v[240:243], v{vT1}, {srd(SRD_T)}, s96 offen")
        a(".if CODE_QUARTER > 8192")
        a(f"s_add_u32 s96, s96, 8192")
        a(f"buffer_load_dwordx4 v[244:247], v{vT1}, {srd(SRD_T)}, s96 offen")
        a(".endif")
        a(f"s_and_b32 s{sT0}, s2, 7")
        a(f"s_lshr_b32 s{sT1}, s2, 3")
        a(f"s_lshr_b32 s{sT2}, s{sT1}, 4")
        a(f"s_lshl_b32 s{sR}, s{sT0}, 1")
        a(f"s_add_u32 s{sR}, s{sR}, s{sT2}")
        a(f"s_and_b32 s{sJ}, s{sT1}, 15")
        a(f"s_and_b32 s{sJJ}, s{sJ}, 7")
        a(f"s_and_b32 s{sRG}, s{sW}, 3")
        a(f"s_lshr_b32 s{sHB}, s{sW}, 2")
        a(f"v_and_b32 v{vL31}, 31, v{vLANE}")
        a(f"v_lshrrev_b32 v{vH}, 5, v{vLANE}")
        a(f"s_mov_b32 s{sONES}, 0x3f803f80")
        a(f"v_cmp_eq_u32 s[{sMASKH}:{sMASKH+1}], 1, v{vH}")
        a("s_waitcnt lgkmcnt(0)")
        self.mk_srd(SRD_X, 4, S * XP)
        self.mk_srd(SRD_WQKV, 6, D * QP)
        self.mk_srd(SRD_W1, 14, D * W1P)
        self.mk_srd(SRD_W2, 18, F * W2P)
        self.mk_srd(SRD_WO, 10, D * W2P)
        self.mk_srd(SRD_WS, 26, WS_USED)
        self.mk_srd(SRD_OUT, 22, S * XP)
        self.mk_srd(SRD_DBG, 24, 256)
        a(f"v_lshrrev_b32 v{vTMP}, 3, v{vLANE}")
        a(f"v_and_b32 v{vTMP+1}, 7, v{vLANE}")
        a(f"v_lshrrev_b32 v{vTMP+2}, 2, v{vLANE}")
        a(f"v_and_b32 v{vTMP+2}, 4, v{vTMP+2}")
        a(f"v_xor_b32 v{vTMP+1}, v{vTMP+1}, v{vTMP+2}")
        a(f"v_min_u32 v{vTMP+3}, 6, v{vTMP+1}")
        a(f"v_lshlrev_b32 v{vTMP+1}, 4, v{vTMP+1}")
        a(f"v_lshlrev_b32 v{vTMP+3}, 4, v{vTMP+3}")
        a(f"s_movk_i32 s{sT0}, {QP}")
        a(f"s_movk_i32 s{sT1}, {W1P}")
        a(f"v_mad_u32_u24 v{vTMP+4}, v{vTMP}, s{sT0}, v{vTMP+3}")
        a(f"v_mad_u32_u24 v{vTMP+5}, v{vTMP}, s{sT1}, v{vTMP+1}")
        a(f"s_cmp_lt_u32 s{sJ}, 8")
        a("s_cbranch_scc1 L_KV")
        a("s_branch L_Q")
        a.label("L_KV")
        a(f"s_cmp_eq_u32 s{sHB}, 0")
        a("s_cbranch_scc1 L_KV0")
        a("s_branch L_KV1")
        a.label("L_Q")
        a(f"s_cmp_eq_u32 s{sHB}, 0")
        a("s_cbranch_scc1 L_Q0")
        a("s_branch L_Q1")

    def a_addr(self, dst, colbase, hrows=8):
        a = self.a; t = vT0; u = vT1
        a(f"v_lshrrev_b32 v{t}, 4, v{vLANE}")
        a(f"v_and_b32 v{t}, 1, v{t}")
        a(f"v_lshlrev_b32 v{t}, 5, v{t}")
        a(f"v_and_b32 v{u}, 3, v{vLANE}")
        a(f"v_lshl_add_u32 v{t}, v{u}, 3, v{t}")
        if colbase: a(f"v_add_u32 v{t}, {colbase}, v{t}")
        a(f"v_lshlrev_b32 v{u}, 3, v{vLANE}")
        a(f"v_and_b32 v{u}, 64, v{u}")
        a(f"v_xor_b32 v{t}, v{t}, v{u}")
        a(f"v_lshrrev_b32 v{u}, 2, v{vLANE}")
        a(f"v_and_b32 v{u}, 3, v{u}")
        a(f"v_mad_u32_u24 v{dst}, v{vH}, {hrows}, v{u}")
        a(f"v_lshl_add_u32 v{dst}, v{dst}, 7, v{t}")
    def a_addr_half(self, dst):
        a = self.a; t = vT0; u = vT1
        a(f"v_lshrrev_b32 v{t}, 4, v{vLANE}")
        a(f"v_and_b32 v{t}, 1, v{t}")
        a(f"v_lshlrev_b32 v{t}, 5, v{t}")
        a(f"v_and_b32 v{u}, 3, v{vLANE}")
        a(f"v_lshl_add_u32 v{t}, v{u}, 3, v{t}")
        a(f"v_lshrrev_b32 v{u}, 2, v{vLANE}")
        a(f"v_and_b32 v{u}, 3, v{u}")
        a(f"v_mad_u32_u24 v{dst}, v{vH}, 8, v{u}")
        a(f"v_lshl_add_u32 v{dst}, v{dst}, 6, v{t}")

    def stage1(self, typ, hb):
        a = self.a
        KV = (typ == "KV")
        SLOT = KV_SLOT if KV else Q_SLOT
        a.label(f"L_{typ}{hb}")
        a.vm = []; a.lg = []
        a(f"s_mul_i32 s{sXO}, s{sR}, {128 * XP}")
        a(f"s_mul_i32 s{sT0}, s{sRG}, {32 * XP}")
        a(f"s_add_u32 s{sXO}, s{sXO}, s{sT0}")
        if KV:
            a(f"s_mul_i32 s{sT0}, s{sJJ}, 112")
            a(f"s_mul_i32 s{sT1}, s{sRG}, {16 * QP}")
            a(f"s_add_u32 s{sT1}, s{sT1}, s{sT0}")
            a(f"s_add_u32 s{sWA}, s{sT1}, 896")
            a(f"s_add_u32 s{sWB}, s{sT1}, 1792")
            a(f"s_lshl_b32 s{sP2}, s{sJJ}, 7")
            a(f"s_mul_i32 s{sT0}, s{sW}, {8 * W1P}")
            a(f"s_add_u32 s{sP2}, s{sP2}, s{sT0}")
            a(f"s_lshl_b32 s{sFS}, s{sJJ}, 2")
            if hb: a(f"s_add_u32 s{sFS}, s{sFS}, 2")
        else:
            a(f"s_mul_i32 s{sT0}, s{sJJ}, 160")
            a(f"s_add_u32 s{sT0}, s{sT0}, 512")
            a(f"s_and_b32 s{sT1}, s{sJJ}, 1")
            a(f"s_lshl_b32 s{sT2}, s{sT1}, 5")
            a(f"s_add_u32 s{sT2}, s{sT2}, s{sT0}")
            a(f"s_xor_b32 s{sT3}, s{sT1}, 1")
            a(f"s_lshl_b32 s{sT3}, s{sT3}, 7")
            a(f"s_add_u32 s{sT3}, s{sT3}, s{sT0}")
            a(f"s_mul_i32 s{sT4}, s{sRG}, {16 * W1P}")
            a(f"s_lshl_b32 s{sWA}, s{sT2}, 1")
            a(f"s_add_u32 s{sWA}, s{sWA}, s{sT4}")
            a(f"s_add_u32 s{sWB}, s{sWA}, 128")
            a(f"s_lshl_b32 s{sWC}, s{sT3}, 1")
            a(f"s_add_u32 s{sWC}, s{sWC}, s{sT4}")
            if hb == 0:
                a(f"s_lshr_b32 s{sFS}, s{sT2}, 4")
                a(f"s_add_u32 s{sFS+1}, s{sFS}, 2")
                a(f"s_lshr_b32 s{sFS+2}, s{sT3}, 4")
            else:
                a(f"s_lshr_b32 s{sFS}, s{sT2}, 4")
                a(f"s_add_u32 s{sFS}, s{sFS}, 4")
                a(f"s_add_u32 s{sFS+1}, s{sFS}, 2")
            a(f"s_mov_b32 s{sT5}, s{sT2}")
            a(f"s_mov_b32 s96, s{sT3}")
            a(f"s_mul_i32 s{sP2}, s{sJJ}, 112")
            a(f"s_mul_i32 s{sT0}, s{sW}, {8 * QP}")
            a(f"s_add_u32 s{sP2}, s{sP2}, s{sT0}")
        a(f"s_lshl_b32 s{sT0}, s{sR}, 2")
        a(f"s_add_u32 s{sT0}, s{sT0}, s{sRG}")
        a(f"s_mul_i32 s{sHSO}, s{sT0}, {112 * 1024}")
        a(f"s_add_u32 s{sHSO}, s{sHSO}, {WS_HF}")
        pat_q, pat_1 = vTMP + 4, vTMP + 5
        if hb == 0:
            a(f"v_lshrrev_b32 v{vT0}, 3, v{vLANE}")
            a(f"s_movk_i32 s{sT0}, {XP}")
            a(f"v_mul_u32_u24 v{vT0}, s{sT0}, v{vT0}")
            a(f"v_and_b32 v{vT1}, 7, v{vLANE}")
            a(f"v_lshrrev_b32 v{vD1}, 4, v{vLANE}")
            a(f"v_xor_b32 v{vD0}, v{vT1}, v{vD1}")
            a(f"v_xor_b32 v{vD1}, 4, v{vD0}")
            a(f"v_lshl_add_u32 v{vD0}, v{vD0}, 4, v{vT0}")
            a(f"v_lshl_add_u32 v{vD1}, v{vD1}, 4, v{vT0}")
        else:
            a(f"v_mov_b32 v{vD0}, v{pat_q if KV else pat_1}")
            if not KV:
                a(f"v_lshrrev_b32 v{vT0}, 2, v{vLANE}")
                a(f"s_movk_i32 s{sT0}, {W1P}")
                a(f"v_mul_u32_u24 v{vT0}, s{sT0}, v{vT0}")
                a(f"v_and_b32 v{vT1}, 3, v{vLANE}")
                a(f"v_lshl_add_u32 v{vD1}, v{vT1}, 4, v{vT0}")
        a(f"v_mov_b32 v{vDP2}, v{pat_1 if KV else pat_q}")

        def issue_chunk(c, sl):
            base = sl * SLOT
            if hb == 0:
                for i in range(4):
                    a(f"s_add_u32 s{sT0}, s{sXO}, {c * 128 + i * 8 * XP}")
                    a(f"s_lshl_b32 s{sT1}, s{sRG}, 12")
                    self.dma(vD0 if i % 2 == 0 else vD1, SRD_X, sT0, (sT1, base + i * 1024), f"c{c}")
            else:
                a(f"s_lshl_b32 s{sT1}, s{sRG}, 11")
                if KV:
                    for (sw, reg) in ((sWA, 16384), (sWB, 24576)):
                        for i in range(2):
                            a(f"s_add_u32 s{sT0}, s{sw}, {c * 64 * QP + i * 8 * QP}")
                            self.dma(vD0, SRD_WQKV, sT0, (sT1, base + reg + i * 1024), f"c{c}")
                else:
                    for (sw, reg) in ((sWA, 16384), (sWB, 24576)):
                        for i in range(2):
                            a(f"s_add_u32 s{sT0}, s{sw}, {c * 64 * W1P + i * 8 * W1P}")
                            self.dma(vD0, SRD_W1, sT0, (sT1, base + reg + i * 1024), f"c{c}")
                    a(f"s_lshl_b32 s{sT1}, s{sRG}, 10")
                    a(f"s_add_u32 s{sT0}, s{sWC}, {c * 64 * W1P}")
                    self.dma(vD1, SRD_W1, sT0, (sT1, base + 32768), f"c{c}")
        def p2_base(cc):
            return 3 * SLOT + cc * 8192 if cc < 4 else (cc - 4) * 8192
        def issue_p2(ccs):
            pitch = W1P if KV else QP
            a(f"s_lshl_b32 s{sT1}, s{sW}, 10")
            for cc in ccs:
                a(f"s_add_u32 s{sT0}, s{sP2}, {cc * 64 * pitch}")
                self.dma(vDP2, SRD_W1 if KV else SRD_WQKV, sT0, (sT1, p2_base(cc)), "p2")

        self.stamp(0)
        for c in range(4): issue_chunk(c, c)

        if hb == 0:
            self.mk_srd(SRD_T, 8, H * DH * DH * 2)
            a(f"s_mul_i32 s{sT0}, s{sJJ}, {2 * 1568}")
            a(f"s_lshl_b32 s{sT1}, s{sRG}, 10")
            a(f"s_add_u32 s{sT0}, s{sT0}, s{sT1}")
            a(f"v_lshlrev_b32 v{vT0}, 4, v{vLANE}")
            self.dma(vT0, SRD_T, sT0, (sT1, L_WPHI), "side")
            a(f"v_mov_b32 v{vT1}, 0")
            a(f"s_lshl_b32 s{sT1}, s{sRG}, 8")
            a(f"v_lshlrev_b32 v{vT0}, 2, v{vLANE}")
            a(f"v_add_u32 v{vT0}, s{sT1}, v{vT0}")
            a(f"v_add_u32 v{vT0}, {L_ZERO}, v{vT0}")
            a.lds(f"ds_write_b32 v{vT0}, v{vT1}", "side")
        else:
            self.mk_srd(SRD_T, 16, F * 2)
            a(f"s_lshl_b32 s{sT0}, s{sRG}, 6")
            a(f"v_add_u32 v{vT0}, s{sT0}, v{vLANE}")
            if KV:
                a(f"s_lshl_b32 s{sT1}, s{sJJ}, 6")
                a(f"v_add_u32 v{vT1}, s{sT1}, v{vT0}")
                n = 64
            else:
                a(f"v_add_u32 v{vT1}, s{sT5}, v{vT0}")
                a(f"s_sub_u32 s96, s96, 128")
                a(f"v_add_u32 v{vTMP}, s96, v{vT0}")
                a(f"v_cmp_gt_u32 vcc, 128, v{vT0}")
                a(f"v_cndmask_b32 v{vT1}, v{vTMP}, v{vT1}, vcc")
                n = 160
            a(f"v_lshlrev_b32 v{vT1}, 1, v{vT1}")
            a.vmem(f"buffer_load_ushort v{vTMP+1}, v{vT1}, {srd(SRD_T)}, 0 offen", "side")
            a(f"v_lshlrev_b32 v{vTMP+2}, 2, v{vT0}")
            a(f"v_add_u32 v{vTMP+2}, {L_B1}, v{vTMP+2}")
            a(f"v_mov_b32 v{vTMP+3}, v{vT0}")
            self.b1n = n

        if KV and hb == 0:
            lab = self.L("nonce")
            a(f"s_or_b32 s{sT0}, s2, s{sW}")
            a(f"s_cmp_lg_u32 s{sT0}, 0")
            a(f"s_cbranch_scc1 {lab}")
            a(f"s_load_dword s{sT1}, s[26:27], 0")
            a("s_waitcnt lgkmcnt(0)")
            a(f"s_add_u32 s{sT1}, s{sT1}, 0x9E3779B8")
            a(f"s_or_b32 s{sT1}, s{sT1}, 1")
            a(f"v_mov_b32 v{vT0}, 0")
            a(f"v_mov_b32 v{vT1}, s{sT1}")
            a(f"s_mov_b64 s[{sEX}:{sEX+1}], exec")
            a("s_mov_b64 exec, 1")
            a(f"buffer_store_dword v{vT1}, v{vT0}, {srd(SRD_DBG)}, 0 offen sc1")
            a(f"buffer_store_dword v{vT1}, v{vT0}, {srd(SRD_WS)}, 0 offen sc1")
            a(f"s_mov_b64 exec, s[{sEX}:{sEX+1}]")
            a.label(lab)
        a(f"s_lshl_b32 s{sT0}, s{sRG}, 12")
        a(f"v_lshrrev_b32 v{vT0}, 1, v{vL31}")
        a(f"v_and_b32 v{vT0}, 7, v{vT0}")
        a(f"v_xor_b32 v{vT0}, v{vT0}, v{vH}")
        a(f"v_lshlrev_b32 v{vT0}, 4, v{vT0}")
        a(f"v_lshl_add_u32 v{vT0}, v{vL31}, 7, v{vT0}")
        a(f"v_add_u32 v{vXR}, s{sT0}, v{vT0}")
        for ks in range(1, 4): a(f"v_xor_b32 v{vXR+ks}, {32*ks}, v{vXR}")
        if KV:
            self.a_addr(vAS, 56 * hb)
            fbs1 = [(0, 16384, 2048, 512, vACC, 0 + hb), (0, 24576, 2048, 512, vACC + 16, 2 + hb)]
            self.a_addr(vAS + 1, 64 * hb)
            fb2 = (1, 2048, 512, vACC + 32, 4 + hb)
        else:
            self.a_addr(vAS, 0); self.a_addr(vAS + 1, 64)
            if hb == 0:
                self.a_addr_half(vAS + 2)
                fbs1 = [(0, 16384, 2048, 512, vACC, 0), (1, 16384, 2048, 512, vACC + 16, 1), (2, 32768, 1024, 256, vACC + 32, 4)]
            else:
                fbs1 = [(0, 24576, 2048, 512, vACC, 2), (1, 24576, 2048, 512, vACC + 16, 3)]
            fb2 = None
        for i in range(4): a(f"v_mov_b32 v{vST+i}, 0")
        for i in range(3): a(f"v_mov_b32 v{vCSA+i}, 0")
        nacc = len(fbs1)
        for fb in fbs1:
            for i in range(16): a(f"v_mov_b32 v{fb[4]+i}, 0")

        if hb == 1:
            a.wait_vm("side")
            a(f"v_lshlrev_b32 v{vTMP+1}, 16, v{vTMP+1}")
            a(f"v_cmp_gt_u32 vcc, {self.b1n}, v{vTMP+3}")
            a(f"s_and_saveexec_b64 s[{sEX}:{sEX+1}], vcc")
            lab = self.L("b1skip")
            a(f"s_cbranch_execz {lab}")
            a(f"ds_write_b32 v{vTMP+2}, v{vTMP+1}")
            a.label(lab)
            a(f"s_mov_b64 exec, s[{sEX}:{sEX+1}]")
            a.wait_lg_all()

        used_addr = sorted(set(fb[0] for fb in fbs1))
        for c in range(7):
            sl = c % 4
            a.wait_vm(f"c{c}", "side")
            a.wait_lg_all()
            a("s_barrier")
            if c == 0: self.stamp(1)
            if 1 <= c <= 3: issue_chunk(c + 3, c - 1)
            if c == 4: issue_p2([0, 1, 2, 3])
            if c == 5: issue_p2([4, 5, 6])
            if c == 5:
                a(f"v_mov_b32 v{vT0}, 0")
                a.vmem(f"buffer_load_dword v{vTMP+15}, v{vT0}, {srd(SRD_DBG)}, 0 offen sc1", "tag")
            for ks in range(4): a(f"v_add_u32 v{vXC+ks}, {sl*SLOT}, v{vXR+ks}")
            for i in used_addr: a(f"v_add_u32 v{vAC+i}, {sl*SLOT}, v{vAS+i}")
            def reads(ks):
                kg = 4 * c + ks
                a.lds(f"ds_read_b128 {vr(vX+4*kg, 4)}, v{vXC+ks}", f"k{kg}")
                for n, fb in enumerate(fbs1):
                    dst = vAF + ((ks & 1) * 3 + n) * 4
                    off = fb[1] + ks * fb[2]
                    a.lds(f"ds_read_b64_tr_b16 {vr(dst, 2)}, v{vAC+fb[0]} offset:{off}", f"k{kg}")
                    a.lds(f"ds_read_b64_tr_b16 {vr(dst+2, 2)}, v{vAC+fb[0]} offset:{off+fb[3]}", f"k{kg}")
            reads(0)
            for ks in range(4):
                kg = 4 * c + ks
                if ks < 3: reads(ks + 1)
                a.wait_lg(f"k{kg}")
                xr = vX + 4 * kg
                for n, fb in enumerate(fbs1):
                    af = vAF + ((ks & 1) * 3 + n) * 4
                    a(f"v_mfma_f32_32x32x16_bf16 {vr(fb[4],16)}, {vr(af,4)}, {vr(xr,4)}, {vr(fb[4],16)}")
                for j in range(4):
                    a(f"v_dot2c_f32_bf16 v{vST + (j&1)}, s{sONES}, v{xr+j}")
                    a(f"v_dot2c_f32_bf16 v{vST + 2 + (j&1)}, v{xr+j}, v{xr+j}")
                lab = self.L("cs")
                a(f"s_cmp_lg_u32 s{sRG}, {ks}")
                a(f"s_cbranch_scc1 {lab}")
                for n, fb in enumerate(fbs1):
                    af = vAF + ((ks & 1) * 3 + n) * 4
                    for j in range(4): a(f"v_dot2c_f32_bf16 v{vCSA+n}, s{sONES}, v{af+j}")
                a.label(lab)
        self.stamp(2)
        a(f"v_add_f32 v{vST}, v{vST}, v{vST+1}")
        a(f"v_add_f32 v{vST+2}, v{vST+2}, v{vST+3}")
        self.xhalf("v_add_f32", vST, vT0)
        self.xhalf("v_add_f32", vST + 2, vT0)
        inv = "0x3b124925"
        a(f"v_mul_f32 v{vST}, {inv}, v{vST}")
        a(f"v_mul_f32 v{vST+2}, {inv}, v{vST+2}")
        a(f"v_fma_f32 v{vST+2}, -v{vST}, v{vST}, v{vST+2}")
        a(f"v_max_f32 v{vST+2}, 0, v{vST+2}")
        self.rne_bf16(vNM, vST)
        a(f"v_xor_b32 v{vNM}, 0x80000000, v{vNM}")
        self.rne_bf16(vT0, vST + 2)
        a(f"v_add_f32 v{vT0}, 0x3727c5ac, v{vT0}")
        self.rne_bf16(vT0, vT0)
        a(f"v_sqrt_f32 v{vT0}, v{vT0}")
        self.rne_bf16(vT0, vT0)
        a(f"v_rcp_f32 v{vRS}, v{vT0}")
        a(f"v_lshlrev_b32 v{vT1}, 2, v{vL31}")
        a(f"v_add_u32 v{vT1}, {L_CS}, v{vT1}")
        for n, fb in enumerate(fbs1):
            a.lds(f"ds_add_f32 v{vT1}, v{vCSA+n} offset:{fb[5]*128}", "csadd")
        a.wait_vm("p2", "tag")
        a.wait_lg_all()
        a("s_barrier")
        a(f"v_readfirstlane_b32 s{sTAG}, v{vTMP+15}")
        vCSR = vXC
        a(f"v_lshlrev_b32 v{vCSR}, 4, v{vH}")
        a(f"v_add_u32 v{vCSR}, {L_CS}, v{vCSR}")

        if KV:
            self.kv_epilogue_a(hb, fbs1, vCSR)
            self.pass2(typ, hb, fb2, p2_base, after_hook=self.kv_partial_flag_hook(hb))
            self.stamp(4)
            if self.debug_stage != 1: self.s2_prefetch(hb, kv=True)
            self.ffn1_epilogue([(fb2[3], fb2[4], hb, sFS)], vCSR, first_barrier=True)
            a.wait_vm("hst")
            a("s_barrier")
            if hb == 0:
                lab = self.L("nohf")
                a(f"s_cmp_lg_u32 s{sRG}, 0")
                a(f"s_cbranch_scc1 {lab}")
                self.check_tag()
                self.h_flag()
                a.label(lab)
        else:
            slots = [(fb[4], fb[5], fb[5], sFS + n) for n, fb in enumerate(fbs1)]
            self.ffn1_epilogue(slots, vCSR, first_barrier=False)
            self.stamp(3)
            self.a_addr(vAS, 56 * hb)
            fb2 = (0, 2048, 512, vACC, 5 + hb)
            self.pass2(typ, hb, fb2, p2_base, after_hook=None, pre_barrier=self.q_hflag_hook)
            self.stamp(4)
            if self.debug_stage != 1 and hb == 0: self.s2_prefetch(hb, kv=False)
            self.q_epilogue(hb, vCSR)
            if hb == 0:
                a(f"s_mul_i32 s{sT0}, s{sRG}, {WO_REG}")
                a(f"v_lshlrev_b32 v{vT0}, 4, v{vLANE}")
                a(f"v_add_u32 v{vT0}, s{sT0}, v{vT0}")
                a(f"v_add_u32 v{vT0}, {L_WO}, v{vT0}")
                for g in range(4): a.lds(f"ds_write_b128 v{vT0}, {vr(vPQ+4*g,4)} offset:{g*1024}", "ho")
            a.wait_lg_all()
            a("s_barrier")
        self.stamp(5)
        if self.debug_stage == 1:
            a.wait_vm_all()
            a("s_branch L_FIN")
        else:
            self.saved_vm = list(a.vm)
            a(f"s_branch L_S2_{'F' if hb == 0 else 'T'}{'K' if KV else 'Q'}")
            self.s2_entry_vm[(typ, hb)] = list(a.vm)

    def h_flag(self):
        a = self.a
        a(f"s_lshl_b32 s{sT0}, s{sR}, 4")
        a(f"s_add_u32 s{sT0}, s{sT0}, s{sJ}")
        a(f"s_lshl_b32 s{sT0}, s{sT0}, 7")
        a(f"s_add_u32 s{sT0}, s{sT0}, {WS_FH}")
        self.store_flag(sT0)

    def q_hflag_hook(self):
        a = self.a
        a.wait_vm("hst")
        a(f"v_mov_b32 v{vT0}, {L_CNT}")
        a(f"v_mov_b32 v{vT1}, 1")
        a(f"s_mov_b64 s[{sEX}:{sEX+1}], exec")
        a("s_mov_b64 exec, 1")
        a(f"ds_add_rtn_u32 v{vT1}, v{vT0}, v{vT1}")
        a(f"s_mov_b64 exec, s[{sEX}:{sEX+1}]")
        a.wait_lg_all()
        a(f"v_readfirstlane_b32 s{sT0}, v{vT1}")
        lab = self.L("notlast")
        a(f"s_cmp_lg_u32 s{sT0}, 7")
        a(f"s_cbranch_scc1 {lab}")
        self.check_tag()
        self.h_flag()
        a.label(lab)

    def stamp(self, i):
        if not self.timing: return
        a = self.a
        a("s_memrealtime s[98:99]")
        a("s_waitcnt lgkmcnt(0)")
        a(f"v_writelane_b32 v0, s98, {i}")
        a.lg = []

    def s2_scalars(self):
        a = self.a
        a(f"s_cmp_ge_u32 s{sJ}, 7")
        a(f"s_cselect_b32 s{sHALF}, 1, 0")
        a(f"s_mul_i32 s{sT0}, s{sHALF}, 7")
        a(f"s_sub_u32 s{sC}, s{sJ}, s{sT0}")
        a(f"s_lshl_b32 s{sRR}, s{sR}, 1")
        a(f"s_add_u32 s{sRR}, s{sRR}, s{sHALF}")

    def w2_pattern(self, dst):
        a = self.a
        a(f"v_lshrrev_b32 v{vT0}, 3, v{vLANE}")
        a(f"v_and_b32 v{vT1}, 7, v{vLANE}")
        a(f"v_lshrrev_b32 v{dst}, 2, v{vLANE}")
        a(f"v_and_b32 v{dst}, 4, v{dst}")
        a(f"v_xor_b32 v{vT1}, v{vT1}, v{dst}")
        a(f"v_lshlrev_b32 v{vT1}, 4, v{vT1}")
        a(f"s_movk_i32 s{sT0}, {W2P}")
        a(f"v_mad_u32_u24 v{dst}, v{vT0}, s{sT0}, v{vT1}")

    @staticmethod
    def fstep_off(n):
        return (0, n) if n < 20 else (1, n - 20)

    def w2_dma(self, n):
        a = self.a
        b, dlt = self.fstep_off(n)
        for i in range(2):
            a(f"s_add_u32 s{sT0}, s{sW2B + b}, {(16 * dlt + 8 * i) * W2P}")
            self.dma(vS_W2P, SRD_W2, sT0, (sRING, (n % NRING) * 2048 + i * 1024), f"w{n}")

    def wo_dma(self):
        a = self.a
        a(f"s_mul_i32 s{sT1}, s{sRG}, {112 * W2P}")
        a(f"s_lshl_b32 s{sT2}, s{sC}, 7")
        a(f"s_add_u32 s{sT1}, s{sT1}, s{sT2}")
        a(f"s_mul_i32 s{sT2}, s{sRG}, {WO_REG}")
        for i in range(15):
            a(f"s_add_u32 s{sT0}, s{sT1}, {8 * i * W2P}")
            self.dma(vS_W2P, SRD_WO, sT0, (sT2, L_WO + i * 1024), "wo")

    def s2_prefetch(self, hb, kv):
        a = self.a
        self.s2_scalars()
        lab = self.L("nopre")
        a(f"s_cmp_ge_u32 s{sJ}, 14")
        a(f"s_cbranch_scc1 {lab}")
        self.w2_pattern(vS_W2P)
        if hb == 0:
            a(f"s_mul_i32 s{sT1}, s{sRG}, {20 * 16 * W2P}")
            a(f"s_lshl_b32 s{sT2}, s{sC}, 7")
            a(f"s_add_u32 s{sW2B}, s{sT1}, s{sT2}")
            a(f"s_add_u32 s{sW2B}, s{sW2B}, {32 * 16 * W2P}")
            a(f"s_mul_i32 s{sT1}, s{sRG}, {8 * 16 * W2P}")
            a(f"s_add_u32 s{sW2B+1}, s{sT1}, s{sT2}")
            a(f"s_mul_i32 s{sRING}, s{sRG}, {RING_BYTES}")
            vm0 = list(a.vm)
            for n in range(NRING): self.w2_dma(n)
            a.vm = vm0
        else:
            vm0 = list(a.vm)
            self.wo_dma()
            a.vm = vm0
        a.label(lab)

    def poll(self, n, vaddr, soff, sleep=2):
        a = self.a
        lp = self.L("poll"); dn = self.L("polldone")
        a(f"s_mov_b64 s[{sEX}:{sEX+1}], exec")
        a(f"s_mov_b64 exec, {(1 << n) - 1}")
        a(f"s_mov_b32 s{sT5}, 0")
        a.label(lp)
        a(f"buffer_load_dword v{vT1}, v{vaddr}, {srd(SRD_WS)}, s{soff} offen sc1")
        a("s_waitcnt vmcnt(0)")
        a(f"v_cmp_ne_u32 vcc, s{sTAG}, v{vT1}")
        a(f"s_add_u32 s{sT5}, s{sT5}, 1")
        a("s_cmp_eq_u64 vcc, 0")
        a(f"s_cbranch_scc1 {dn}")
        a(f"s_sleep {sleep}")
        a(f"s_cmp_lt_u32 s{sT5}, 0x20000")
        a(f"s_cbranch_scc1 {lp}")
        a.label(dn)
        a(f"s_mov_b64 exec, s[{sEX}:{sEX+1}]")
        a.vm = []

    def final_loads(self):
        a = self.a
        a(f"s_lshl_b32 s{sT0}, s{sRR}, 6")
        a(f"s_lshl_b32 s{sT1}, s{sW}, 3")
        a(f"s_add_u32 s{sT0}, s{sT0}, s{sT1}")
        a(f"s_mul_i32 s{sT0}, s{sT0}, {XP}")
        a(f"s_lshl_b32 s{sT1}, s{sC}, 7")
        a(f"s_add_u32 s{sOUTO}, s{sT0}, s{sT1}")
        a(f"v_lshrrev_b32 v{vT0}, 3, v{vLANE}")
        a(f"s_movk_i32 s{sT0}, {XP}")
        a(f"v_mul_u32_u24 v{vT0}, s{sT0}, v{vT0}")
        a(f"v_and_b32 v{vT1}, 7, v{vLANE}")
        a(f"v_lshlrev_b32 v{vT1}, 4, v{vT1}")
        a(f"v_add_u32 v{vS_OUTV}, v{vT0}, v{vT1}")
        a.vmem(f"buffer_load_dwordx4 {vr(vS_X,4)}, v{vS_OUTV}, {srd(SRD_X)}, s{sOUTO} offen", "fx")
        self.mk_srd(SRD_T, sB2P, D * 2)
        a(f"s_lshl_b32 s{sT1}, s{sC}, 7")
        a.vmem(f"buffer_load_dwordx4 {vr(vS_B2,4)}, v{vT1}, {srd(SRD_T)}, s{sT1} offen", "fx")

    def write_partial(self, acc, sbase_reg, const):
        a = self.a
        a(f"v_mul_u32_u24 v{vT0}, 144, v{vL31}")
        a(f"v_lshl_add_u32 v{vT0}, v{vH}, 3, v{vT0}")
        a(f"v_add_u32 v{vT0}, s{sbase_reg}, v{vT0}")
        if const: a(f"v_add_u32 v{vT0}, {const}, v{vT0}")
        for nb in range(2):
            for sb in range(2):
                A = acc + (nb * 2 + sb) * 16
                for i in range(8): a(f"v_cvt_pk_bf16_f32 v{A+i}, v{A+2*i}, v{A+2*i+1}")
                for g4 in range(4):
                    a.lds(f"ds_write_b64 v{vT0}, {vr(A+2*g4,2)} offset:{sb*32*144 + nb*64 + g4*16}", "pw")
                if len(a.lg) >= 12: a.wait_lg_all()
        a.wait_lg_all()

    def f_wave(self):
        a = self.a
        a.label("L_S2_FK"); a.label("L_S2_FQ")
        a.vm = []; a.lg = []
        self.check_tag()
        a(f"s_cmp_ge_u32 s{sJ}, 14")
        a("s_cbranch_scc0 L_S2_FMAIN")
        a("s_branch L_RED")
        a.label("L_S2_FMAIN")
        self.final_loads()
        self.a_addr(vS_A0, 0, hrows=4)
        self.a_addr(vS_A1, 64, hrows=4)
        a(f"v_add_u32 v{vS_A0}, s{sRING}, v{vS_A0}")
        a(f"v_add_u32 v{vS_A1}, s{sRING}, v{vS_A1}")
        a(f"v_lshlrev_b32 v{vS_HL}, 4, v{vLANE}")
        a(f"s_mul_i32 s{sT0}, s{sRR}, {2 * 112 * 1024}")
        a(f"s_add_u32 s{sT0}, s{sT0}, {WS_HF}")
        a(f"s_mul_i32 s{sT1}, s{sRG}, {20 * 1024}")
        a(f"s_add_u32 s{sHB0}, s{sT0}, s{sT1}")
        a(f"s_add_u32 s{sHB0}, s{sHB0}, {32 * 1024}")
        a(f"s_lshl_b32 s{sT1}, s{sRG}, 13")
        a(f"s_add_u32 s{sHB0+1}, s{sT0}, s{sT1}")
        a(f"v_lshlrev_b32 v{vT0}, 7, v{vLANE}")
        a(f"s_lshl_b32 s{sT0}, s{sR}, 11")
        a(f"s_add_u32 s{sT0}, s{sT0}, {WS_FH}")
        self.poll(16, vT0, sT0)
        self.stamp(6)
        def hload(n):
            b, dlt = self.fstep_off(n)
            B = vS_B + (n % NHB) * 8
            a(f"s_add_u32 s{sT0}, s{sHB0 + b}, {dlt * 1024}")
            a.vmem(f"buffer_load_dwordx4 {vr(B,4)}, v{vS_HL}, {srd(SRD_WS)}, s{sT0} offen sc1", f"h{n}")
            a(f"s_add_u32 s{sT0}, s{sT0}, {112 * 1024}")
            a.vmem(f"buffer_load_dwordx4 {vr(B+4,4)}, v{vS_HL}, {srd(SRD_WS)}, s{sT0} offen sc1", f"h{n}")
        def areads(n):
            Ab = vS_AF + (n & 1) * 8
            off = (n % NRING) * 2048
            a.lds(f"ds_read_b64_tr_b16 {vr(Ab,2)}, v{vS_A0} offset:{off}", f"a{n}")
            a.lds(f"ds_read_b64_tr_b16 {vr(Ab+2,2)}, v{vS_A0} offset:{off+1024}", f"a{n}")
            a.lds(f"ds_read_b64_tr_b16 {vr(Ab+4,2)}, v{vS_A1} offset:{off}", f"a{n}")
            a.lds(f"ds_read_b64_tr_b16 {vr(Ab+6,2)}, v{vS_A1} offset:{off+1024}", f"a{n}")
        for n in range(NHB): hload(n)
        areads(0)
        for n in range(28):
            a.wait_vm(f"h{n}", f"w{n+1}")
            if n + 1 < 28: areads(n + 1)
            a.wait_lg(f"a{n}")
            Ab = vS_AF + (n & 1) * 8; B = vS_B + (n % NHB) * 8
            for nb in range(2):
                for sb in range(2):
                    A = vS_ACC + (nb * 2 + sb) * 16
                    a(f"v_mfma_f32_32x32x16_bf16 {vr(A,16)}, {vr(Ab+4*nb,4)}, {vr(B+4*sb,4)}, {vr(A,16) if n else 0}")
            if n + NRING < 28: self.w2_dma(n + NRING)
            if n + NHB < 28: hload(n + NHB)
        self.stamp(7)
        self.write_partial(vS_ACC, sRING, 0)
        a("s_branch L_FINAL")

    def reducer(self):
        a = self.a
        a.label("L_RED")
        a.vm = []; a.lg = []
        a(f"s_sub_u32 s{sT1}, s{sJ}, 14")
        a(f"s_lshl_b32 s{sT0}, s{sR}, 1")
        a(f"s_add_u32 s{sT0}, s{sT0}, s{sT1}")
        a(f"s_mov_b32 s{sT4}, s{sT0}")
        a(f"s_lshl_b32 s{sT0}, s{sT0}, 11")
        a(f"s_add_u32 s{sT0}, s{sT0}, {WS_FP}")
        a(f"v_lshlrev_b32 v{vT0}, 7, v{vLANE}")
        self.poll(16, vT0, sT0)
        self.stamp(6)
        a(f"s_lshl_b32 s{sT0}, s{sR}, 17")
        a(f"s_lshl_b32 s{sT1}, s{sT1}, 12")
        a(f"s_add_u32 s{sT0}, s{sT0}, s{sT1}")
        a(f"s_lshl_b32 s{sT1}, s{sRG}, 10")
        a(f"s_add_u32 s{sT0}, s{sT0}, s{sT1}")
        a(f"s_add_u32 s{sT0}, s{sT0}, {WS_PART}")
        a(f"v_lshlrev_b32 v{vT0}, 4, v{vLANE}")
        R = 128
        for rp in range(16):
            a.vmem(f"buffer_load_dwordx4 {vr(R+4*rp,4)}, v{vT0}, {srd(SRD_WS)}, s{sT0} offen sc1", f"r{rp}")
            if rp < 15: a(f"s_add_u32 s{sT0}, s{sT0}, 8192")
        for rp in range(1, 16):
            a.wait_vm(f"r{rp}")
            for i in range(4): a(f"v_add_f32 v{R+i}, v{R+i}, v{R+4*rp+i}")
        a(f"v_cvt_pk_bf16_f32 v{R+4}, v{R}, v{R+1}")
        a(f"v_cvt_pk_bf16_f32 v{R+5}, v{R+2}, v{R+3}")
        lab = self.L("nz")
        a(f"s_cmp_lg_u32 s{sRG}, 3")
        a(f"s_cbranch_scc1 {lab}")
        a(f"v_mov_b32 v{vT1}, 0")
        a(f"v_cndmask_b32 v{R+4}, v{R+4}, v{vT1}, s[{sMASKH}:{sMASKH+1}]")
        a(f"v_cndmask_b32 v{R+5}, v{R+5}, v{vT1}, s[{sMASKH}:{sMASKH+1}]")
        a.label(lab)
        a(f"s_lshl_b32 s{sT0}, s{sT4}, 11")
        a(f"s_lshl_b32 s{sT1}, s{sRG}, 9")
        a(f"s_add_u32 s{sT0}, s{sT0}, s{sT1}")
        a(f"s_add_u32 s{sT0}, s{sT0}, {WS_KVF}")
        a(f"v_lshlrev_b32 v{vT0}, 3, v{vLANE}")
        a.vmem(f"buffer_store_dwordx2 {vr(R+4,2)}, v{vT0}, {srd(SRD_WS)}, s{sT0} offen sc1", "kst")
        a.wait_vm_all()
        a(f"s_lshl_b32 s{sT0}, s{sT4}, 2")
        a(f"s_add_u32 s{sT0}, s{sT0}, s{sRG}")
        a(f"s_lshl_b32 s{sT0}, s{sT0}, 7")
        a(f"s_add_u32 s{sT0}, s{sT0}, {WS_FK}")
        self.store_flag(sT0)
        self.stamp(7)
        a("s_branch L_FIN")

    def t_wave(self):
        a = self.a
        a.label("L_S2_TQ")
        a.vm = []; a.lg = []
        self.check_tag()
        self.s2_scalars()
        PA, PB = 224, vPQ
        a(f"s_mul_i32 s{sT0}, s{sRG}, {WO_REG}")
        a(f"v_lshlrev_b32 v{vT0}, 4, v{vLANE}")
        a(f"v_add_u32 v{vT0}, s{sT0}, v{vT0}")
        a(f"v_add_u32 v{vT0}, {L_WO}, v{vT0}")
        for g in range(4): a.lds(f"ds_read_b128 {vr(PA+4*g,4)}, v{vT0} offset:{g*1024}", "ho")
        a.wait_lg_all()
        lab = self.L("nowo")
        a(f"s_cmp_ge_u32 s{sJ}, 14")
        a(f"s_cbranch_scc1 {lab}")
        self.w2_pattern(vS_W2P)
        self.wo_dma()
        a.vm = []
        a.label(lab)
        a(f"v_lshlrev_b32 v{vT0}, 7, v{vLANE}")
        a(f"s_lshl_b32 s{sT0}, s{sJJ}, 11")
        a(f"s_add_u32 s{sT0}, s{sT0}, {WS_FK}")
        self.poll(16, vT0, sT0)
        self.stamp(6)
        KVR = 128
        a(f"v_lshlrev_b32 v{vT0}, 3, v{vLANE}")
        a(f"s_lshl_b32 s{sT0}, s{sJJ}, 13")
        a(f"s_add_u32 s{sT0}, s{sT0}, {WS_KVF}")
        for hh in range(2):
            for blk in range(2):
                for g in range(4):
                    off = blk * 2048 + g * 512
                    dst = KVR + hh * 16 + blk * 8 + g * 2
                    a.vmem(f"buffer_load_dwordx2 {vr(dst,2)}, v{vT0}, {srd(SRD_WS)}, s{sT0} offen offset:{off} sc1", f"kv{hh}")
            if hh == 0: a(f"s_add_u32 s{sT0}, s{sT0}, 4096")
        a(f"s_lshl_b32 s{sT1}, s{sR}, 2")
        a(f"s_add_u32 s{sT1}, s{sT1}, s{sRG}")
        a(f"s_lshl_b32 s{sT1}, s{sT1}, 4")
        a(f"s_lshl_b32 s{sT2}, s{sJJ}, 1")
        a(f"s_add_u32 s{sT1}, s{sT1}, s{sT2}")
        a(f"s_lshl_b32 s{sT1}, s{sT1}, 11")
        a(f"s_add_u32 s{sT1}, s{sT1}, {WS_OF}")
        a(f"v_lshlrev_b32 v{vS_HL}, 4, v{vLANE}")
        for hh in range(2):
            Dd = 64 + 16 * hh; P = PA if hh == 0 else PB
            a.wait_vm(f"kv{hh}")
            k = 0
            for blk in range(2):
                for st in range(2):
                    a(f"v_mfma_f32_32x32x16_bf16 {vr(Dd,16)}, {vr(KVR + hh*16 + blk*8 + st*4,4)}, {vr(P + blk*8 + st*4,4)}, {vr(Dd,16) if k else 0}")
                    k += 1
        for hh in range(2):
            Dd = 64 + 16 * hh; O = 96 + 8 * hh
            a(f"v_mov_b32 v{vT0}, v{Dd+12}")
            a(f"v_mov_b32 v{vT1}, v{Dd+12}")
            a(f"v_permlane32_swap_b32 v{vT0}, v{vT1}")
            a(f"v_add_f32 v{vT1}, 0x358637bd, v{vT1}")
            a(f"v_rcp_f32 v{vT1}, v{vT1}")
            for i in range(16): a(f"v_mul_f32 v{Dd+i}, v{Dd+i}, v{vT1}")
            for i in range(8): a(f"v_cvt_pk_bf16_f32 v{O+i}, v{Dd+2*i}, v{Dd+2*i+1}")
            a(f"v_mov_b32 v{vT0}, 0")
            a(f"v_cndmask_b32 v{O+6}, v{O+6}, v{vT0}, s[{sMASKH}:{sMASKH+1}]")
            a(f"v_cndmask_b32 v{O+7}, v{O+7}, v{vT0}, s[{sMASKH}:{sMASKH+1}]")
            a.vmem(f"buffer_store_dwordx4 {vr(O,4)}, v{vS_HL}, {srd(SRD_WS)}, s{sT1} offen offset:{hh*2048} sc1", "ost")
            a.vmem(f"buffer_store_dwordx4 {vr(O+4,4)}, v{vS_HL}, {srd(SRD_WS)}, s{sT1} offen offset:{hh*2048+1024} sc1", "ost")
        a.wait_vm_all()
        a(f"s_lshl_b32 s{sT0}, s{sR}, 3")
        a(f"s_add_u32 s{sT0}, s{sT0}, s{sJJ}")
        a(f"s_lshl_b32 s{sT0}, s{sT0}, 2")
        a(f"s_add_u32 s{sT0}, s{sT0}, s{sRG}")
        a(f"s_lshl_b32 s{sT0}, s{sT0}, 7")
        a(f"s_add_u32 s{sT0}, s{sT0}, {WS_FO}")
        self.store_flag(sT0)
        self.stamp(7)
        a(f"s_cmp_ge_u32 s{sJ}, 14")
        a("s_cbranch_scc0 L_T_WO")
        a("s_branch L_FIN")
        a.label("L_S2_TK")
        self.check_tag()
        a.label("L_T_WO")
        a.vm = []; a.lg = []
        self.final_loads()
        self.a_addr(vS_A0, 0, hrows=4)
        self.a_addr(vS_A1, 64, hrows=4)
        a(f"s_mul_i32 s{sRING}, s{sRG}, {WO_REG}")
        a(f"s_add_u32 s{sRING}, s{sRING}, {L_WO}")
        a(f"v_add_u32 v{vS_A0}, s{sRING}, v{vS_A0}")
        a(f"v_add_u32 v{vS_A1}, s{sRING}, v{vS_A1}")
        a(f"v_lshlrev_b32 v{vS_HL}, 4, v{vLANE}")
        a(f"v_lshrrev_b32 v{vT0}, 1, v{vLANE}")
        a(f"v_lshlrev_b32 v{vT0}, 2, v{vT0}")
        a(f"v_and_b32 v{vT1}, 1, v{vLANE}")
        a(f"v_add_u32 v{vT0}, v{vT0}, v{vT1}")
        a(f"v_lshlrev_b32 v{vT0}, 7, v{vT0}")
        a(f"s_lshl_b32 s{sT0}, s{sR}, 5")
        a(f"s_lshl_b32 s{sT1}, s{sRG}, 3")
        a(f"s_add_u32 s{sT0}, s{sT0}, s{sT1}")
        a(f"s_lshl_b32 s{sT1}, s{sHALF}, 1")
        a(f"s_add_u32 s{sT0}, s{sT0}, s{sT1}")
        a(f"s_lshl_b32 s{sT0}, s{sT0}, 7")
        a(f"s_add_u32 s{sT0}, s{sT0}, {WS_FO}")
        self.poll(4, vT0, sT0, sleep=4)
        self.stamp(8)
        a(f"s_lshl_b32 s{sT0}, s{sRR}, 5")
        a(f"s_lshl_b32 s{sT1}, s{sRG}, 2")
        a(f"s_add_u32 s{sT0}, s{sT0}, s{sT1}")
        a(f"s_lshl_b32 s{sT0}, s{sT0}, 11")
        a(f"s_add_u32 s{sT0}, s{sT0}, {WS_OF}")
        a(f"s_add_u32 s{sT1}, s{sT0}, {16 * 2048}")
        OB = 128
        for hh in range(4):
            for st in range(2):
                k = hh * 2 + st
                off = k * 1024
                for sb, so in ((0, sT0), (1, sT1)):
                    if off < 4096:
                        a.vmem(f"buffer_load_dwordx4 {vr(OB + k*8 + sb*4,4)}, v{vS_HL}, {srd(SRD_WS)}, s{so} offen offset:{off} sc1", f"o{k}")
                    else:
                        a(f"s_add_u32 s{sT2}, s{so}, 4096")
                        a.vmem(f"buffer_load_dwordx4 {vr(OB + k*8 + sb*4,4)}, v{vS_HL}, {srd(SRD_WS)}, s{sT2} offen offset:{off-4096} sc1", f"o{k}")
        def areads(k):
            hh, st = k // 2, k % 2
            Ab = vS_AF + (k & 1) * 8
            off = (28 * hh + 16 * st) * 128
            a.lds(f"ds_read_b64_tr_b16 {vr(Ab,2)}, v{vS_A0} offset:{off}", f"a{k}")
            a.lds(f"ds_read_b64_tr_b16 {vr(Ab+2,2)}, v{vS_A0} offset:{off+1024}", f"a{k}")
            a.lds(f"ds_read_b64_tr_b16 {vr(Ab+4,2)}, v{vS_A1} offset:{off}", f"a{k}")
            a.lds(f"ds_read_b64_tr_b16 {vr(Ab+6,2)}, v{vS_A1} offset:{off+1024}", f"a{k}")
        areads(0)
        for k in range(8):
            if k < 7: areads(k + 1)
            a.wait_vm(f"o{k}")
            a.wait_lg(f"a{k}")
            Ab = vS_AF + (k & 1) * 8
            for nb in range(2):
                for sb in range(2):
                    A = vS_ACC + (nb * 2 + sb) * 16
                    a(f"v_mfma_f32_32x32x16_bf16 {vr(A,16)}, {vr(Ab+4*nb,4)}, {vr(OB + k*8 + sb*4,4)}, {vr(A,16) if k else 0}")
        self.stamp(9)
        self.write_partial(vS_ACC, sRING, 0)

    def final(self):
        a = self.a
        a.label("L_FINAL")
        a.lg = []
        a("s_waitcnt vmcnt(0) lgkmcnt(0)")
        a.vm = []
        a("s_barrier")
        self.stamp(10)
        a(f"v_lshrrev_b32 v{vT0}, 3, v{vLANE}")
        a(f"s_lshl_b32 s{sT0}, s{sW}, 3")
        a(f"v_add_u32 v{vT0}, s{sT0}, v{vT0}")
        a(f"v_mul_u32_u24 v{vT0}, 144, v{vT0}")
        a(f"v_and_b32 v{vT1}, 7, v{vLANE}")
        a(f"v_lshl_add_u32 v{vT0}, v{vT1}, 4, v{vT0}")
        a(f"v_add_u32 v{vT1}, {L_WO}, v{vT0}")
        R = 128
        for q in range(4): a.lds(f"ds_read_b128 {vr(R+4*q,4)}, v{vT0} offset:{q*RING_BYTES}", f"g{q}")
        for t in range(4): a.lds(f"ds_read_b128 {vr(R+16+4*t,4)}, v{vT1} offset:{t*WO_REG}", f"s{t}")
        Gs, Ss = 64, 72
        a(f"s_mov_b32 s{sT0}, 0x00003f80")
        a(f"s_mov_b32 s{sT1}, 0x3f800000")
        for e in range(16): a(f"v_mov_b32 v{Gs+e}, 0")
        def acc8(dst, src):
            for d in range(4):
                a(f"v_dot2c_f32_bf16 v{dst+2*d}, s{sT0}, v{src+d}")
                a(f"v_dot2c_f32_bf16 v{dst+2*d+1}, s{sT1}, v{src+d}")
        acc8(Gs, vS_B2)
        for q in range(4):
            a.wait_lg(f"g{q}"); acc8(Gs, R + 4 * q)
        for t in range(4):
            a.wait_lg(f"s{t}"); acc8(Ss, R + 16 + 4 * t)
        T = 80
        a(f"s_mov_b32 s{sT2}, 0x{(LOG2E ^ 0x80000000):08x}")
        for e in range(8): a(f"v_mul_f32 v{T+e}, s{sT2}, v{Gs+e}")
        for e in range(8): a(f"v_exp_f32 v{T+e}, v{T+e}")
        for e in range(8): a(f"v_add_f32 v{T+e}, 1.0, v{T+e}")
        for e in range(8): a(f"v_rcp_f32 v{T+e}, v{T+e}")
        for e in range(8): a(f"v_mul_f32 v{T+e}, v{T+e}, v{Gs+e}")
        X = 88
        for d in range(4):
            a(f"v_lshlrev_b32 v{X+2*d}, 16, v{vS_X+d}")
            a(f"v_and_b32 v{X+2*d+1}, 0xffff0000, v{vS_X+d}")
        for e in range(8): a(f"v_fmac_f32 v{X+e}, v{T+e}, v{Ss+e}")
        for d in range(4): a(f"v_cvt_pk_bf16_f32 v{96+d}, v{X+2*d}, v{X+2*d+1}")
        a(f"buffer_store_dwordx4 v[96:99], v{vS_OUTV}, {srd(SRD_OUT)}, s{sOUTO} offen")
        self.stamp(11)

    def fin(self):
        a = self.a
        a.label("L_FIN")
        if self.timing:
            a("s_waitcnt vmcnt(0)")
            a(f"s_lshl_b32 s{sT0}, s2, 3")
            a(f"s_add_u32 s{sT0}, s{sT0}, s{sW}")
            a(f"s_lshl_b32 s{sT0}, s{sT0}, 8")
            a(f"s_add_u32 s{sT0}, s{sT0}, {WS_DBG + 0x200000}")
            a(f"v_lshlrev_b32 v{vT0}, 2, v{vLANE}")
            a(f"buffer_store_dword v0, v{vT0}, {srd(SRD_WS)}, s{sT0} offen")

    def load_wphi(self, hb):
        a = self.a; t = vT0; u = vT1; v = vTMP
        a(f"v_lshrrev_b32 v{t}, 4, v{vLANE}")
        a(f"v_and_b32 v{t}, 1, v{t}")
        a(f"v_and_b32 v{u}, 3, v{vLANE}")
        a(f"v_lshlrev_b32 v{t}, 2, v{t}")
        a(f"v_add_u32 v{t}, v{t}, v{u}")
        a(f"v_min_u32 v{t}, 6, v{t}")
        a(f"v_lshlrev_b32 v{t}, 3, v{t}")
        a(f"v_lshrrev_b32 v{u}, 2, v{vLANE}")
        a(f"v_and_b32 v{u}, 3, v{u}")
        a(f"v_lshl_add_u32 v{u}, v{vH}, 2, v{u}")
        a(f"v_mul_u32_u24 v{u}, 56, v{u}")
        a(f"v_add_u32 v{t}, v{t}, v{u}")
        a(f"v_add_u32 v{t}, {L_WPHI + hb * 1568}, v{t}")
        a(f"v_mov_b32 v{u}, {L_ZERO - 1344}")
        a(f"v_cndmask_b32 v{v}, v{t}, v{u}, s[{sMASKH}:{sMASKH+1}]")
        a.lds(f"ds_read_b64_tr_b16 {vr(vWP,2)}, v{t}", "wp")
        a.lds(f"ds_read_b64_tr_b16 {vr(vWP+2,2)}, v{t} offset:448", "wp")
        a.lds(f"ds_read_b64_tr_b16 {vr(vWP+4,2)}, v{t} offset:896", "wp")
        a.lds(f"ds_read_b64_tr_b16 {vr(vWP+6,2)}, v{v} offset:1344", "wp")

    def read_table(self, dst, vaddr, off):
        for g in range(4):
            self.a.lds(f"ds_read_b128 {vr(dst+4*g,4)}, v{vaddr} offset:{off + 32*g}", "tab")

    def softmax(self, P, E1, E2, outp, outn, scale):
        a = self.a
        mx, mn, t, bp, bn = vST, vST + 1, vST + 2, vST + 3, vT0
        a(f"v_max3_f32 v{mx}, v{P}, v{P+1}, v{P+2}")
        a(f"v_min3_f32 v{mn}, v{P}, v{P+1}, v{P+2}")
        for i in range(3, 15, 2):
            a(f"v_max3_f32 v{mx}, v{mx}, v{P+i}, v{P+i+1}")
            a(f"v_min3_f32 v{mn}, v{mn}, v{P+i}, v{P+i+1}")
        a(f"v_max_f32 v{mx}, v{mx}, v{P+15}")
        a(f"v_min_f32 v{mn}, v{mn}, v{P+15}")
        self.xhalf("v_max_f32", mx, t)
        self.xhalf("v_min_f32", mn, t)
        a(f"v_mul_f32 v{bp}, v{mx}, v{scale}")
        a(f"v_mul_f32 v{bn}, v{mn}, v{scale}")
        for i in range(16):
            a(f"v_fma_f32 v{E1+i}, v{P+i}, v{scale}, -v{bp}")
            a(f"v_fma_f32 v{E2+i}, -v{P+i}, v{scale}, v{bn}")
        for i in range(16):
            a(f"v_exp_f32 v{E1+i}, v{E1+i}")
            a(f"v_exp_f32 v{E2+i}, v{E2+i}")
        maskf = vT1
        a(f"v_cndmask_b32 v{maskf}, 1.0, 0, s[{sMASKH}:{sMASKH+1}]")
        for (E, s0, s1) in ((E1, mx, mn), (E2, t, bp)):
            a(f"v_add_f32 v{s0}, v{E}, v{E+1}")
            a(f"v_add_f32 v{s1}, v{E+12}, v{E+13}")
            for i in range(2, 12): a(f"v_add_f32 v{s0}, v{s0}, v{E+i}")
            a(f"v_add_f32 v{s1}, v{s1}, v{E+14}")
            a(f"v_add_f32 v{s1}, v{s1}, v{E+15}")
            a(f"v_fmac_f32 v{s0}, v{s1}, v{maskf}")
        self.xhalf("v_add_f32", mx, mn)
        self.xhalf("v_add_f32", t, bp)
        a(f"v_rcp_f32 v{mx}, v{mx}")
        a(f"v_rcp_f32 v{t}, v{t}")
        for i in range(16):
            a(f"v_mul_f32 v{E1+i}, v{E1+i}, v{mx}")
            a(f"v_mul_f32 v{E2+i}, v{E2+i}, v{t}")
        for i in range(8):
            a(f"v_cvt_pk_bf16_f32 v{outp+i}, v{E1+2*i}, v{E1+2*i+1}")
            a(f"v_cvt_pk_bf16_f32 v{outn+i}, v{E2+2*i}, v{E2+2*i+1}")

    def phi_from_acc(self, acc, cs_slot, vCSR, hb, outp, outn):
        a = self.a
        CS = vAF
        self.read_table(CS, vCSR, cs_slot * 128)
        self.load_wphi(hb)
        a.wait_lg("tab")
        for i in range(16): a(f"v_fma_f32 v{acc+i}, v{CS+i}, v{vNM}, v{acc+i}")
        KB = vAF + 16
        for i in range(8): a(f"v_cvt_pk_bf16_f32 v{KB+i}, v{acc+2*i}, v{acc+2*i+1}")
        a.wait_lg_all()
        P = acc
        a(f"v_mfma_f32_32x32x16_bf16 {vr(P,16)}, {vr(vWP,4)}, {vr(KB,4)}, 0")
        a(f"v_mfma_f32_32x32x16_bf16 {vr(P,16)}, {vr(vWP+4,4)}, {vr(KB+4,4)}, {vr(P,16)}")
        sc = vST + 4 if False else vTMP + 14
        a(f"v_mul_f32 v{sc}, 0x{LOG2E:08x}, v{vRS}")
        self.softmax(P, vAF, vTMP - 16 if False else vACC + 32, outp, outn, sc)

    def kv_epilogue_a(self, hb, fbs1, vCSR):
        a = self.a
        accK, accV = fbs1[0][4], fbs1[1][4]
        CSV = vTMP - 0
        TV = vACC + 32
        self.read_table(TV, vCSR, fbs1[1][5] * 128)
        a.wait_lg("tab")
        for i in range(16):
            a(f"v_fma_f32 v{accV+i}, v{TV+i}, v{vNM}, v{accV+i}")
        for i in range(16):
            a(f"v_mul_f32 v{accV+i}, v{accV+i}, v{vRS}")
        VB = vTMP
        for i in range(8): a(f"v_cvt_pk_bf16_f32 v{VB+i}, v{accV+2*i}, v{accV+2*i+1}")
        a(f"v_mov_b32 v{vT0}, 0x00003f80")
        a(f"v_cndmask_b32 v{VB+6}, v{VB+6}, v{vT0}, s[{sMASKH}:{sMASKH+1}]")
        a(f"v_cndmask_b32 v{VB+7}, v{VB+7}, 0, s[{sMASKH}:{sMASKH+1}]") if False else None
        a(f"v_mov_b32 v{vT1}, 0")
        a(f"v_cndmask_b32 v{VB+7}, v{VB+7}, v{vT1}, s[{sMASKH}:{sMASKH+1}]")
        L_VT = 2 * KV_SLOT
        a(f"s_lshl_b32 s{sT0}, s{sRG}, 11")
        a(f"v_lshrrev_b32 v{vT0}, 1, v{vL31}")
        a(f"v_and_b32 v{vT0}, 7, v{vT0}")
        a(f"v_xor_b32 v{vT0}, v{vT0}, v{vH}")
        a(f"v_lshlrev_b32 v{vT0}, 3, v{vT0}")
        a(f"v_lshl_add_u32 v{vT0}, v{vL31}, 6, v{vT0}")
        a(f"v_add_u32 v{vT0}, s{sT0}, v{vT0}")
        a(f"v_add_u32 v{vT0}, {L_VT + hb*8192}, v{vT0}")
        for g in range(4):
            if g: a(f"v_xor_b32 v{vT1}, {16*g}, v{vT0}")
            a.lds(f"ds_write_b64 v{vT1 if g else vT0}, {vr(VB+2*g,2)}", "vw")
        outp, outn = vTMP, vTMP + 8
        a.wait_lg_all()
        outp, outn = vPQ, vPQ + 8
        self.phi_from_acc(accK, fbs1[0][5], vCSR, hb, outp, outn)
        L_PK = KV_SLOT
        a(f"s_lshl_b32 s{sT0}, s{sRG}, 12")
        a(f"v_lshrrev_b32 v{vT0}, 2, v{vL31}")
        a(f"v_and_b32 v{vT0}, 3, v{vT0}")
        a(f"v_lshlrev_b32 v{vT0}, 1, v{vT0}")
        a(f"v_and_b32 v{vT1}, 1, v{vL31}")
        a(f"v_add_u32 v{vT0}, v{vT0}, v{vT1}")
        a(f"v_xor_b32 v{vT0}, v{vT0}, v{vH}")
        a(f"v_lshlrev_b32 v{vT0}, 3, v{vT0}")
        a(f"v_lshlrev_b32 v{vT1}, 5, v{vL31}")
        a(f"v_and_b32 v{vT1}, 64, v{vT1}")
        a(f"v_add_u32 v{vT0}, v{vT0}, v{vT1}")
        a(f"v_lshl_add_u32 v{vT0}, v{vL31}, 7, v{vT0}")
        a(f"v_add_u32 v{vT0}, s{sT0}, v{vT0}")
        a(f"v_add_u32 v{vT0}, {L_PK + hb*16384}, v{vT0}")
        for blk, src in ((0, outp), (1, outn)):
            for g in range(4):
                k = 64 * blk + 16 * g
                if k: a(f"v_xor_b32 v{vT1}, {k}, v{vT0}")
                a.lds(f"ds_write_b64 v{vT1 if k else vT0}, {vr(src+2*g,2)}", "pw")
        a.wait_lg_all()
        a("s_barrier")
        lab = self.L("nopart")
        a(f"s_cmp_gt_u32 s{sRG}, 1")
        a(f"s_cbranch_scc1 {lab}")
        pA, pB, p, rr = vTMP, vTMP + 2, vTMP + 4, vTMP + 5
        a(f"v_lshrrev_b32 v{p}, 2, v{vLANE}")
        a(f"v_and_b32 v{p}, 4, v{p}")
        a(f"v_and_b32 v{vT0}, 3, v{vLANE}")
        a(f"v_add_u32 v{p}, v{p}, v{vT0}")
        a(f"v_lshrrev_b32 v{rr}, 2, v{vLANE}")
        a(f"v_and_b32 v{rr}, 3, v{rr}")
        for q in range(2):
            a(f"v_lshlrev_b32 v{vT0}, 1, v{vH}")
            if q: a(f"v_add_u32 v{vT0}, 1, v{vT0}")
            a(f"v_lshlrev_b32 v{vT0}, 1, v{vT0}")
            a(f"v_and_b32 v{vT1}, 1, v{rr}")
            a(f"v_add_u32 v{vT0}, v{vT0}, v{vT1}")
            a(f"v_xor_b32 v{vT0}, v{vT0}, v{p}")
            a(f"v_lshlrev_b32 v{vT0}, 3, v{vT0}")
            a(f"v_lshrrev_b32 v{vT1}, 1, v{rr}")
            a(f"v_xor_b32 v{vT1}, s{sRG}, v{vT1}")
            a(f"v_lshl_add_u32 v{vT0}, v{vT1}, 6, v{vT0}")
            a(f"v_lshl_add_u32 v{vT1}, v{vH}, 3, v{rr}")
            if q: a(f"v_add_u32 v{vT1}, 4, v{vT1}")
            a(f"v_lshl_add_u32 v{pA+q}, v{vT1}, 7, v{vT0}")
            a(f"v_add_u32 v{pA+q}, {L_PK + hb*16384}, v{pA+q}")
            a(f"v_lshrrev_b32 v{vT0}, 1, v{rr}")
            a(f"v_lshl_add_u32 v{vT0}, v{vH}, 2, v{vT0}")
            if q: a(f"v_add_u32 v{vT0}, 2, v{vT0}")
            a(f"v_xor_b32 v{vT0}, v{vT0}, v{p}")
            a(f"v_lshlrev_b32 v{vT0}, 3, v{vT0}")
            a(f"v_lshl_add_u32 v{pB+q}, v{vT1}, 6, v{vT0}")
            a(f"v_add_u32 v{pB+q}, {L_VT + hb*8192}, v{pB+q}")
        PD = vACC
        def preads(ks):
            b = vAF + (ks & 1) * 8
            a.lds(f"ds_read_b64_tr_b16 {vr(b,2)}, v{pA} offset:{ks*2048}", f"p{ks}")
            a.lds(f"ds_read_b64_tr_b16 {vr(b+2,2)}, v{pA+1} offset:{ks*2048}", f"p{ks}")
            a.lds(f"ds_read_b64_tr_b16 {vr(b+4,2)}, v{pB} offset:{ks*1024}", f"p{ks}")
            a.lds(f"ds_read_b64_tr_b16 {vr(b+6,2)}, v{pB+1} offset:{ks*1024}", f"p{ks}")
        preads(0)
        for ks in range(8):
            if ks < 7: preads(ks + 1)
            a.wait_lg(f"p{ks}")
            b = vAF + (ks & 1) * 8
            a(f"v_mfma_f32_32x32x16_bf16 {vr(PD,16)}, {vr(b,4)}, {vr(b+4,4)}, {vr(PD,16) if ks else 0}")
        a(f"s_lshl_b32 s{sT0}, s{sJJ}, 1")
        if hb: a(f"s_add_u32 s{sT0}, s{sT0}, 1")
        a(f"s_lshl_b32 s{sT0}, s{sT0}, 4")
        a(f"s_add_u32 s{sT0}, s{sT0}, s{sR}")
        a(f"s_lshl_b32 s{sT0}, s{sT0}, 1")
        a(f"s_add_u32 s{sT0}, s{sT0}, s{sRG}")
        a(f"s_lshl_b32 s{sT0}, s{sT0}, 12")
        a(f"s_add_u32 s{sT0}, s{sT0}, {WS_PART}")
        a(f"v_lshlrev_b32 v{vT0}, 4, v{vLANE}")
        for g in range(4):
            a(f"buffer_store_dwordx4 {vr(PD+4*g,4)}, v{vT0}, {srd(SRD_WS)}, s{sT0} offen offset:{g*1024} sc1")
        a.label(lab)
        a.lg = []

    def kv_partial_flag_hook(self, hb):
        def hook():
            a = self.a
            lab = self.L("nopf")
            a(f"s_cmp_gt_u32 s{sRG}, 1")
            a(f"s_cbranch_scc1 {lab}")
            a("s_waitcnt vmcnt(0)")
            self.check_tag()
            a(f"s_lshl_b32 s{sT0}, s{sJJ}, 2")
            a(f"s_add_u32 s{sT0}, s{sT0}, {2*hb}")
            a(f"s_add_u32 s{sT0}, s{sT0}, s{sRG}")
            a(f"s_lshl_b32 s{sT0}, s{sT0}, 4")
            a(f"s_add_u32 s{sT0}, s{sT0}, s{sR}")
            a(f"s_lshl_b32 s{sT0}, s{sT0}, 7")
            a(f"s_add_u32 s{sT0}, s{sT0}, {WS_FP}")
            self.store_flag(sT0)
            a.label(lab)
        return hook

    def check_tag(self):
        a = self.a
        ok = self.L("tagok"); lp = self.L("tagloop")
        a(f"s_cmp_lg_u32 s{sTAG}, 0")
        a(f"s_cbranch_scc1 {ok}")
        a(f"s_mov_b32 s{sT5}, 0")
        a.label(lp)
        a(f"v_mov_b32 v{vT0}, 0")
        a(f"buffer_load_dword v{vT1}, v{vT0}, {srd(SRD_DBG)}, 0 offen sc1")
        a("s_waitcnt vmcnt(0)")
        a(f"v_readfirstlane_b32 s{sTAG}, v{vT1}")
        a(f"s_add_u32 s{sT5}, s{sT5}, 1")
        a(f"s_cmp_lg_u32 s{sTAG}, 0")
        a(f"s_cbranch_scc1 {ok}")
        a(f"s_cmp_lt_u32 s{sT5}, 0x40000")
        a(f"s_cbranch_scc1 {lp}")
        a.label(ok)

    def store_flag(self, soff):
        a = self.a
        a(f"v_mov_b32 v{vT0}, 0")
        a(f"v_mov_b32 v{vT1}, s{sTAG}")
        a(f"s_mov_b64 s[{sEX}:{sEX+1}], exec")
        a("s_mov_b64 exec, 1")
        a(f"buffer_store_dword v{vT1}, v{vT0}, {srd(SRD_WS)}, s{soff} offen sc1")
        a(f"s_mov_b64 exec, s[{sEX}:{sEX+1}]")

    def pass2(self, typ, hb, fb2, p2_base, after_hook, pre_barrier=None):
        a = self.a
        ai, kstride, qd, acc, css = fb2
        a(f"v_add_u32 v{vAC}, {p2_base(0)}, v{vAS+ai}")
        a(f"v_add_u32 v{vAC+1}, {p2_base(4)}, v{vAS+ai}")
        a(f"v_mov_b32 v{vCSA}, 0")
        def reads(kg):
            cc, ks = kg // 4, kg % 4
            va = vAC if cc < 4 else vAC + 1
            off = (cc % 4 if cc < 4 else cc - 4) * 8192 + ks * kstride
            dst = vAF + (kg % 3) * 4
            a.lds(f"ds_read_b64_tr_b16 {vr(dst,2)}, v{va} offset:{off}", f"q{kg}")
            a.lds(f"ds_read_b64_tr_b16 {vr(dst+2,2)}, v{va} offset:{off+qd}", f"q{kg}")
        reads(0); reads(1)
        for kg in range(28):
            if kg + 2 < 28: reads(kg + 2)
            a.wait_lg(f"q{kg}")
            af = vAF + (kg % 3) * 4
            a(f"v_mfma_f32_32x32x16_bf16 {vr(acc,16)}, {vr(af,4)}, {vr(vX+4*kg,4)}, {vr(acc,16) if kg else 0}")
            lab = self.L("cs2")
            a(f"s_cmp_lg_u32 s{sRG}, {kg % 4}")
            a(f"s_cbranch_scc1 {lab}")
            for j in range(4): a(f"v_dot2c_f32_bf16 v{vCSA}, s{sONES}, v{af+j}")
            a.label(lab)
            if kg == 12 and after_hook is not None: after_hook()
        a(f"v_lshlrev_b32 v{vT1}, 2, v{vL31}")
        a(f"v_add_u32 v{vT1}, {L_CS}, v{vT1}")
        a.lds(f"ds_add_f32 v{vT1}, v{vCSA} offset:{css*128}", "csadd")
        a.wait_lg_all()
        if pre_barrier is not None: pre_barrier()
        a("s_barrier")

    def ffn1_epilogue(self, slots, vCSR, first_barrier):
        a = self.a
        vB1R = vXC + 1
        a(f"v_lshlrev_b32 v{vB1R}, 4, v{vH}")
        a(f"v_add_u32 v{vB1R}, {L_B1}, v{vB1R}")
        a(f"v_lshlrev_b32 v{vXC+2}, 4, v{vLANE}")
        for (acc, css, b1s, sfs) in slots:
            CS, B1 = vAF, vTMP
            self.read_table(CS, vCSR, css * 128)
            self.read_table(B1, vB1R, b1s * 128)
            a.wait_lg_all()
            for i in range(16): a(f"v_fma_f32 v{acc+i}, v{CS+i}, v{vNM}, v{acc+i}")
            for i in range(16): a(f"v_fma_f32 v{acc+i}, v{acc+i}, v{vRS}, v{B1+i}")
            for i in range(16): a(f"v_max_f32 v{acc+i}, 0, v{acc+i}")
            for i in range(16): a(f"v_mul_f32 v{acc+i}, v{acc+i}, v{acc+i}")
            for i in range(8): a(f"v_cvt_pk_bf16_f32 v{acc+i}, v{acc+2*i}, v{acc+2*i+1}")
            a(f"s_lshl_b32 s{sT0}, s{sfs}, 10")
            a(f"s_add_u32 s{sT0}, s{sT0}, s{sHSO}")
            a.vmem(f"buffer_store_dwordx4 {vr(acc,4)}, v{vXC+2}, {srd(SRD_WS)}, s{sT0} offen sc1", "hst")
            a.vmem(f"buffer_store_dwordx4 {vr(acc+4,4)}, v{vXC+2}, {srd(SRD_WS)}, s{sT0} offen offset:1024 sc1", "hst")

    def q_epilogue(self, hb, vCSR):
        a = self.a
        self.phi_from_acc(vACC, 5 + hb, vCSR, hb, vPQ, vPQ + 8)
        if self.debug_stage == 1:
            a(f"s_lshl_b32 s{sT0}, s{sR}, 3")
            a(f"s_add_u32 s{sT0}, s{sT0}, s{sJJ}")
            a(f"s_lshl_b32 s{sT0}, s{sT0}, 3")
            a(f"s_add_u32 s{sT0}, s{sT0}, s{sW}")
            a(f"s_lshl_b32 s{sT0}, s{sT0}, 12")
            a(f"s_add_u32 s{sT0}, s{sT0}, {WS_DBG}")
            a(f"v_lshlrev_b32 v{vT0}, 4, v{vLANE}")
            for g in range(4):
                a.vmem(f"buffer_store_dwordx4 {vr(vPQ+4*g,4)}, v{vT0}, {srd(SRD_WS)}, s{sT0} offen offset:{g*1024}", "dbg")

    def build(self):
        a = self.a
        self.prologue()
        for typ in ("KV", "Q"):
            for hb in (0, 1):
                self.stage1(typ, hb)
        if self.debug_stage != 1:
            self.f_wave()
            self.reducer()
            self.t_wave()
            self.final()
        self.fin()
        a.label("L_END")
        a("s_endpgm")
        a.label("L_CODE_END")
        body, nins = fix_hazards(a.text())
        hdr = []
        hdr.append(f"; @launch grid=(256,1,1) block=(512,1,1) lds={LDS_BYTES}")
        hdr.append('.amdgcn_target "amdgcn-amd-amdhsa--gfx950"')
        hdr.append(".text")
        hdr.append(f".globl {KNAME}_kernel")
        hdr.append(".p2align 8")
        hdr.append(f".type {KNAME}_kernel,@function")
        hdr.append(".set CODE_QUARTER, ((L_CODE_END - L_PC + 3*8192 + 4095) / 4 / 1024) * 1024") if False else None
        hdr.append(f"{KNAME}_kernel:")
        tail = []
        tail.append('.section .rodata,"a"')
        tail.append(".p2align 6")
        tail.append(f".amdhsa_kernel {KNAME}_kernel")
        tail += ["  .amdhsa_next_free_vgpr 256", "  .amdhsa_next_free_sgpr 102", "  .amdhsa_accum_offset 256",
                 "  .amdhsa_group_segment_fixed_size 0", "  .amdhsa_kernarg_size 96", "  .amdhsa_user_sgpr_count 2",
                 "  .amdhsa_user_sgpr_kernarg_segment_ptr 1", "  .amdhsa_system_sgpr_workgroup_id_x 1", ".end_amdhsa_kernel"]
        txt = "\n".join(h for h in hdr if h) + "\n" + body + "\n" + "\n".join(tail) + "\n"
        return txt, nins

if __name__ == "__main__":
    dbg = int(sys.argv[2]) if len(sys.argv) > 2 else None
    g = G(debug_stage=(dbg if dbg == 1 else None), timing=(dbg == 2))
    txt, nins = g.build()
    import subprocess, os, re
    out = sys.argv[1]
    def assemble(t):
        open("_tmp.s", "w").write(t)
        r = subprocess.run(["clang", "-x", "assembler", "-target", "amdgcn-amd-amdhsa", "-mcpu=gfx950", "-c", "_tmp.s", "-o", "_tmp.o"], capture_output=True, text=True)
        if r.returncode: print(r.stderr[:4000]); raise SystemExit(1)
        r = subprocess.run(["llvm-objdump", "-h", "_tmp.o"], capture_output=True, text=True)
        return int(re.search(r"\.text\s+([0-9a-f]+)", r.stdout).group(1), 16)
    t0 = txt.replace("CODE_QUARTER", "8192")
    size = assemble(t0)
    q = ((size + 3) // 4 + 1023) // 1024 * 1024
    q = min(q, 16384)
    txt = txt.replace("CODE_QUARTER", str(q))
    size = assemble(txt)
    open(out, "w").write(txt)
    print(f"wrote {out}: code {size} bytes, quarter {q}, hazard nops inserted {nins}")
```
